```python
import torch

def _softmax(x, axis=-1):
    return torch.softmax(x, dim=axis)
def _gelu(x):
    return torch.nn.functional.gelu(x, approximate="tanh")
def _silu(x):
    return torch.nn.functional.silu(x)
def _sigmoid(x):
    return torch.sigmoid(x)
def _layernorm(x, axis=-1, eps=1e-5):
    m = x.mean(dim=axis, keepdim=True)
    v = x.var(dim=axis, keepdim=True, unbiased=False)
    return (x - m) / torch.sqrt(v + eps)
def _scatter_add(tgt, idx, src, axis=0):
    return tgt.clone().index_add_(axis, idx, src)
def _segment_sum(src, seg, n):
    out = torch.zeros((n,) + src.shape[1:], dtype=src.dtype)
    return out.index_add_(0, seg, src)
def _pad(x, pw):
    flat = tuple(v for pair in reversed(pw) for v in pair)
    return torch.nn.functional.pad(x, flat)

kernel_name = 'parallel_sum__softmax_full_mha__glu_gated_reglu__prompt'

def setup_inputs():

    _w = (lambda a: (lambda t: t.to(torch.bfloat16) if t.is_floating_point() else t)(torch.as_tensor(a)))
    def _A_setup():
        B, S, D = 1, 2048, 512
        return {
            "x": _w((lambda *s: torch.randn(*s, dtype=torch.bfloat16) * 0.05)(B, S, D)),
            "wqkv": _w((lambda *s: torch.randn(*s, dtype=torch.bfloat16) * 0.05)(D, 3 * D)),
            "wo": _w((lambda *s: torch.randn(*s, dtype=torch.bfloat16) * 0.05)(D, D)),
        }
    _A_in = _A_setup()

    def _B_setup():
        B, S, D, F = 1, 2048, 512, 1792
        return {
            "x": _w((lambda *s: torch.randn(*s, dtype=torch.bfloat16) * 0.05)(B, S, D)),
            "W_gate": _w((lambda *s: torch.randn(*s, dtype=torch.bfloat16) * 0.4)(D, F) * (2.0 / D) ** 0.5),
            "W_up": _w((lambda *s: torch.randn(*s, dtype=torch.bfloat16) * 0.4)(D, F) * (2.0 / D) ** 0.5),
            "W_down": _w((lambda *s: torch.randn(*s, dtype=torch.bfloat16) * 0.4)(F, D) * (1.0 / F) ** 0.5),
        }
    _B_in = _B_setup()

    return {
        "A_x": _A_in["x"],
        "A_wqkv": _A_in["wqkv"],
        "A_wo": _A_in["wo"],
        "B_x": _B_in["x"],
        "B_W_gate": _B_in["W_gate"],
        "B_W_up": _B_in["W_up"],
        "B_W_down": _B_in["W_down"],
    }

def reference(A_x, A_wqkv, A_wo, B_x, B_W_gate, B_W_up, B_W_down):
    def _A_ref(x, wqkv, wo):
        B, S, D = x.shape
        H = 32; Dh = D // H
        qkv = (lambda x, *d: x.permute(*d))((x @ wqkv).reshape(B, S, 3, H, Dh), 2, 0, 3, 1, 4)
        q, k, v = qkv[0], qkv[1], qkv[2]
        scale = Dh ** -0.5
        scores = torch.einsum("bhqd,bhkd->bhqk", q, k) * scale
        p = _softmax(scores, axis=-1)
        o = torch.einsum("bhqk,bhkd->bhqd", p, v)
        return (lambda x, *d: x.permute(*d))(o, 0, 2, 1, 3).reshape(B, S, D) @ wo

    def _B_ref(x, W_gate, W_up, W_down):
        gate = torch.einsum("bsd,df->bsf", x, W_gate)
        up = torch.einsum("bsd,df->bsf", x, W_up)
        gate = gate * (lambda x, dt: x.to(dt))(gate > 0, gate.dtype)
        h = gate * up
        return torch.einsum("bsf,fd->bsd", h, W_down)

    x = A_x
    xn = _layernorm(x, axis=-1)
    return x + _A_ref(xn, A_wqkv, A_wo) + _B_ref(xn, B_W_gate, B_W_up, B_W_down)
```

```python
import re

def v(a, n=1):
    return "v%d" % a if n == 1 else "v[%d:%d]" % (a, a + n - 1)
def s(a, n=1):
    return "s%d" % a if n == 1 else "s[%d:%d]" % (a, a + n - 1)

class Asm:
    def __init__(self):
        self.lines = []
    def __call__(self, text):
        for l in text.split("\n"):
            l = l.strip()
            if l:
                self.lines.append(l)
    def label(self, name):
        self.lines.append(name + ":")
    def text(self):
        out = []
        for l in self.lines:
            if l.endswith(":") or l.startswith(".") or l.startswith(";"):
                out.append(l)
            else:
                out.append("  " + l)
        return "\n".join(out) + "\n"

_reg = re.compile(r"^(-|abs\()?([vsa])(?:(\d+)|\[(\d+):(\d+)\])\)?$")
def regs(op):
    op = op.strip()
    op = op.replace("|", "")
    if op == "vcc": return {("s", 106), ("s", 107)}
    if op == "exec": return {("s", 126), ("s", 127)}
    if op == "m0": return {("s", 124)}
    m = _reg.match(op)
    if not m: return set()
    k = m.group(2)
    if m.group(3) is not None:
        return {(k, int(m.group(3)))}
    return {(k, i) for i in range(int(m.group(4)), int(m.group(5)) + 1)}

TRANS = ("v_exp_f32", "v_log_f32", "v_rcp_f32", "v_rsq_f32", "v_sqrt_f32")
def parse(line):
    line = line.split(";")[0].strip()
    m = re.match(r"^(\S+)\s*(.*)$", line)
    op, rest = m.group(1), m.group(2)
    ops = [o.strip() for o in re.split(r",(?![^\[]*\])", rest)] if rest else []
    if ops:
        last = ops[-1].split()
        mods = " ".join(last[1:])
        ops[-1] = last[0] if last else ""
    else:
        mods = ""
    I = dict(op=op, ops=ops, mods=mods, R=set(), W=set(), kind="other", A=set(), B=set(), C=set(), line=line)
    rs = [regs(o) for o in ops]
    def U(l):
        r = set()
        for x in l: r |= x
        return r
    if op.startswith("v_mfma"):
        I["kind"] = "mfma"; I["W"] = rs[0]; I["A"] = rs[1]; I["B"] = rs[2]; I["C"] = rs[3]; I["R"] = U(rs[1:])
        I["passes"] = 8 if "32x32" in op else 4
    elif op.startswith("v_smfmac"):
        I["kind"] = "mfma"; I["W"] = rs[0]; I["A"] = rs[1] | rs[3]; I["B"] = rs[2]; I["C"] = rs[0]; I["R"] = U(rs)
        I["passes"] = 8 if "32x32" in op else 4
    elif op.startswith("v_cmp"):
        I["kind"] = "valu"; I["W"] = rs[0]; I["R"] = U(rs[1:])
    elif op.startswith("v_permlane"):
        I["kind"] = "valu"; I["W"] = U(rs); I["R"] = U(rs); I["perm"] = True
    elif op.startswith("v_readfirstlane") or op.startswith("v_readlane"):
        I["kind"] = "valu"; I["W"] = rs[0]; I["R"] = U(rs[1:]); I["rfl"] = True
    elif op.startswith("v_"):
        I["kind"] = "valu"; I["W"] = rs[0]; I["R"] = U(rs[1:])
        if op.startswith(("v_fmac", "v_dot2c")): I["R"] |= rs[0]
        if op.startswith(("v_add_co", "v_sub_co", "v_addc_co")): I["W"] |= rs[1]; I["R"] = U(rs[2:])
        if op.startswith("v_dot2"): I["dot"] = True
        if op.split("_e32")[0].split("_e64")[0] in TRANS: I["trans"] = True
        if "dpp" in op or "row_" in mods or "quad_perm" in mods: I["dpp"] = True
        if "sdwa" in op: I["sdwa"] = True
    elif op.startswith("ds_read") or op.startswith("ds_bpermute") or op.startswith("ds_swizzle"):
        I["kind"] = "ds"; I["W"] = rs[0]; I["R"] = U(rs[1:])
    elif op.startswith("ds_add_rtn") :
        I["kind"] = "ds"; I["W"] = rs[0]; I["R"] = U(rs[1:])
    elif op.startswith("ds_"):
        I["kind"] = "ds"; I["R"] = U(rs)
    elif op.startswith("buffer_load") or op.startswith("global_load"):
        I["kind"] = "vmem"
        if " lds" in (" " + mods) or "_lds_" in op:
            I["R"] = U(rs) | {("s", 124)}; I["ldsdma"] = True
        else:
            I["W"] = rs[0]; I["R"] = U(rs[1:])
    elif op.startswith("buffer_store") or op.startswith("global_store") or op.startswith("buffer_atomic") or op.startswith("global_atomic"):
        I["kind"] = "vmem"; I["R"] = U(rs)
        if "x4" in op or "x3" in op:
            I["wide"] = rs[0] if op.startswith("buffer") else rs[1]
        if "atomic" in op and "sc0" in mods: I["W"] = rs[0]
    elif op.startswith("s_"):
        I["kind"] = "salu"
        if op in ("s_nop",):
            I["nop"] = int(ops[0]) + 1
        elif op.startswith(("s_cmp", "s_waitcnt", "s_barrier", "s_cbranch", "s_branch", "s_endpgm", "s_setprio", "s_sleep")):
            I["R"] = U(rs)
        else:
            I["W"] = rs[0] if rs else set(); I["R"] = U(rs[1:])
            if "saveexec" in op: I["W"] |= regs("exec")
    return I

def need(p, c):
    n = 0
    pk, ck = p["kind"], c["kind"]
    vW = {r for r in p["W"] if r[0] != "s"}
    sW = {r for r in p["W"] if r[0] == "s"}
    if pk == "valu":
        if ck == "mfma" and vW & c["R"]: n = max(n, 2)
        if c.get("perm") and vW & c["R"]: n = max(n, 2)
        if c.get("dpp") and vW & c["R"]: n = max(n, 2)
        if c.get("rfl") and vW & c["R"]: n = max(n, 1)
        if p.get("trans") and ck in ("valu",) and not c.get("trans") and vW & c["R"]: n = max(n, 1)
        if p.get("trans") and ck in ("vmem", "ds") and vW & c["R"]: n = max(n, 1)
        if p.get("dot") and vW & (c["R"] | c["W"]) and ck != "salu":
            if not (c["op"] == p["op"] and not (vW & (regs(c["ops"][1]) | regs(c["ops"][2])))): n = max(n, 3)
        if p.get("sdwa") and ck == "valu" and vW & (c["R"] | c["W"]): n = max(n, 1)
        if sW:
            if ck == "vmem" and sW & c["R"]: n = max(n, 5)
            if ck == "valu" and sW & c["R"]: n = max(n, 2)
            if ck == "valu" and c["op"].startswith("v_cndmask") and len(c["ops"]) == 4 and sW & regs(c["ops"][3]): n = max(n, 2)
            if sW & regs("exec") and ck == "mfma": n = max(n, 4)
    if pk == "salu":
        if ("s", 124) in p["W"] and c.get("ldsdma"): n = max(n, 1)
    if pk == "mfma":
        P = p["passes"]
        t = {4: (0, 6, 8, 8, 3), 8: (0, 10, 12, 12, 7)}[P]
        if ck == "mfma":
            if p["W"] & (c["A"] | c["B"]): n = max(n, t[2])
            if p["W"] & c["C"] and not (p["W"] == c["C"] and P == c["passes"]): n = max(n, t[1])
            if p["W"] & c["W"] and not (p["W"] & c["C"]) and p["W"] != c["W"]: n = max(n, t[1])
        elif ck in ("valu", "vmem", "ds"):
            if p["W"] & (c["R"] | c["W"]): n = max(n, t[3])
            if ck == "valu" and p["C"] & c["W"]: n = max(n, t[4])
    if p.get("wide") and ck == "valu" and p["wide"] & c["W"]: n = max(n, 2)
    if p.get("wide") and ck in ("ds", "vmem", "mfma") and p["wide"] & c["W"]: n = max(n, 1)
    return n

def check(lines, window=24):
    ins = []; lab = {}
    for l in lines:
        if l.startswith(";") or l.startswith("."):
            continue
        if l.endswith(":"):
            lab[l[:-1]] = len(ins); continue
        ins.append(parse(l))
    def succ(i):
        I = ins[i]
        if I["op"] == "s_endpgm": return []
        if I["op"] == "s_branch": return [lab[I["ops"][0]]]
        r = [i + 1] if i + 1 < len(ins) else []
        if I["op"].startswith("s_cbranch"): r.append(lab[I["ops"][0]])
        return r
    bad = []
    for i, p in enumerate(ins):
        if p["kind"] == "other" or (not p["W"] and not p.get("wide")): continue
        stack = [(j, 0) for j in succ(i)]
        seen = {}
        while stack:
            j, d = stack.pop()
            if d >= 20 or j >= len(ins): continue
            if seen.get(j, 99) <= d: continue
            seen[j] = d
            c = ins[j]
            n = need(p, c)
            if n > d: bad.append((i, j, n, d, p["line"], c["line"]))
            dd = d + c.get("nop", 1)
            for k in succ(j): stack.append((k, dd))
    return bad
```

```python
import sys, math
sys.path.insert(0, "gen")
from asmlib import *

NAME = "parallel_sum__softmax_full_mha__glu_gated_reglu__prompt"
KF, VF, ONESF, QF, OF, HF = 0, 2 << 20, 4 << 20, 6 << 20, 8 << 20, 10 << 20
WS_BYTES = 18 << 20
QSCALE = 0.25 * math.log2(math.e)
import struct
def f32(x): return "0x%08x" % struct.unpack("<I", struct.pack("<f", x))[0]

class Cnt:
    def __init__(self, a, name, mx):
        self.a, self.name, self.mx = a, name, mx
        self.q = []
    def issue(self, tag=None):
        self.q.append(tag)
    def wait(self, tag):
        idx = [i for i, t in enumerate(self.q) if t == tag]
        if not idx: return
        n = len(self.q) - 1 - idx[-1]
        self.a("s_waitcnt %s(%d)" % (self.name, min(n, self.mx)))
        self.q = self.q[len(self.q) - min(n, self.mx):] if min(n, self.mx) else []
    def drain(self):
        self.a("s_waitcnt %s(0)" % self.name)
        self.q = []

sX, sWQ, sFF, sWS, sWD, sWO, sOUT = 24, 28, 32, 36, 40, 44, 48
sW, sRB, sHP = 52, 53, 54

def srd(a, d, ptr, nbytes):
    a("s_mov_b32 %s, %s" % (s(d), s(ptr)))
    a("s_mov_b32 %s, %s" % (s(d + 1), s(ptr + 1)))
    a("s_mov_b32 %s, %d" % (s(d + 2), nbytes))
    a("s_mov_b32 %s, 0x20000" % s(d + 3))

def entry(a, name):
    a(".p2align 8")
    a(".type %s,@function" % name)
    a.label(name)
    a("s_cmp_ge_u32 s2, 256")
    a("s_cbranch_scc1 %s_end" % name)
    a("s_load_dwordx16 s[4:19], s[0:1], 0")
    a("s_load_dwordx4 s[20:23], s[0:1], 64")
    a("v_lshrrev_b32 v1, 6, v0")
    a("v_and_b32 v0, 63, v0")
    a("v_readfirstlane_b32 %s, v1" % s(sW))
    a("s_and_b32 %s, s2, 7" % s(sRB))
    a("s_lshl_b32 %s, %s, 1" % (s(sRB), s(sRB)))
    a("s_bfe_u32 s3, s2, 0x10003")
    a("s_or_b32 %s, %s, s3" % (s(sRB), s(sRB)))
    a("s_lshr_b32 %s, s2, 4" % s(sHP))

def finish(a, name):
    a.label(name + "_end")
    a("s_endpgm")

def desc(name):
    return """.amdhsa_kernel %s
  .amdhsa_next_free_vgpr 256
  .amdhsa_next_free_sgpr 96
  .amdhsa_accum_offset 256
  .amdhsa_group_segment_fixed_size 0
  .amdhsa_kernarg_size 80
  .amdhsa_user_sgpr_count 2
  .amdhsa_user_sgpr_kernarg_segment_ptr 1
  .amdhsa_system_sgpr_workgroup_id_x 1
  .amdhsa_float_denorm_mode_32 3
.end_amdhsa_kernel
""" % name

def mfma(a, d, A, B, C):
    a("v_mfma_f32_32x32x16_bf16 %s, %s, %s, %s" % (v(d, 16), v(A, 4), v(B, 4), "0" if C is None else v(C, 16)))

def XF(t): return 128 + 4 * t
XSLOT = lambda st: st * 16384
W01 = 131072
FSLOT = [98304, 0, 28800, 57600]
PARK = 127104

def g_part1(a):
    vm = Cnt(a, "vmcnt", 63); lg = Cnt(a, "lgkmcnt", 15)
    vE, vO, vW0, vXa, vT0 = 2, 3, 4, 8, 80
    vWa = 12
    accK, accV, accQ, WB = 16, 32, 48, 64
    sA, sB, sWq, sM, sT0, sT1, sOne = 56, 57, 58, 59, 60, 61, 62
    a(f"""
    v_lshrrev_b32 v1, 3, v0
    v_lshlrev_b32 v1, 10, v1
    v_lshrrev_b32 v5, 4, v0
    v_and_b32 v6, 7, v0
    v_xor_b32 v5, v5, v6
    v_lshl_add_u32 {v(vE)}, v5, 4, v1
    v_xor_b32 {v(vO)}, 64, {v(vE)}
    v_add_u32 {v(vO)}, 7168, {v(vO)}
    s_lshl_b32 {s(sA)}, {s(sRB)}, 2
    s_add_u32 {s(sA)}, {s(sA)}, {s(sW)}
    s_lshl_b32 {s(sA)}, {s(sA)}, 15
    s_add_u32 {s(sB)}, {s(sA)}, 14336
    s_lshl_b32 {s(sM)}, {s(sW)}, 12
    s_mul_i32 {s(sWq)}, {s(sW)}, 49152
    s_lshl_b32 s3, {s(sHP)}, 6
    s_add_u32 {s(sWq)}, {s(sWq)}, s3
    s_mov_b32 {s(sOne)}, 0x3f803f80
    """)
    for e in range(3):
        a(f"""
        v_add_u32 v80, {64*e}, v0
        v_mul_u32_u24 v81, 21846, v80
        v_lshrrev_b32 v81, 18, v81
        v_mul_u32_u24 v82, 12, v81
        v_sub_u32 v82, v80, v82
        v_mul_u32_u24 v81, 3072, v81
        v_lshrrev_b32 v83, 2, v82
        v_lshl_add_u32 v81, v83, 10, v81
        v_and_b32 v82, 3, v82
        v_lshl_add_u32 v81, v82, 4, v81
        v_subrev_u32 {v(vW0+e)}, {1024*e}, v81
        """)
    a("s_waitcnt lgkmcnt(0)")
    srd(a, sX, 4, 2048 * 1024)
    srd(a, sWQ, 6, 512 * 3072)
    for st in range(8):
        a(f"s_add_u32 m0, {s(sM)}, {XSLOT(st)}")
        a(f"s_add_u32 {s(sT0)}, {s(sA)}, {128*st}")
        a(f"s_add_u32 {s(sT1)}, {s(sB)}, {128*st}")
        for i in range(4):
            a(f"buffer_load_dwordx4 {v(vE if i % 2 == 0 else vO)}, {s(sX,4)}, {s(sT0 if i < 2 else sT1)} offen offset:{1024*i} lds")
            vm.issue(("x", st))
    def wdma(j):
        if j < 2:
            a(f"s_mul_i32 s3, {s(sW)}, 3072")
            a(f"s_add_u32 m0, s3, {W01 + 4*j*3072}")
        else:
            a(f"s_add_u32 m0, {s(sM)}, {XSLOT(j-2)}")
        a(f"s_add_u32 {s(sT0)}, {s(sWq)}, {j*196608}")
        for e in range(3):
            a(f"buffer_load_dwordx4 {v(vW0+e)}, {s(sWQ,4)}, {s(sT0)} offen offset:{1024*e} lds")
            vm.issue(("w", j))
    wdma(0); wdma(1)
    srd(a, sWS, 22, WS_BYTES)
    a(f"s_and_b32 s3, {s(sW)}, 1")
    a("s_cmp_eq_u32 s3, 0")
    a(f"s_cselect_b32 {s(sFF)}, s12, s14")
    a(f"s_cselect_b32 {s(sFF+1)}, s13, s15")
    a(f"s_mov_b32 {s(sFF+2)}, {512*3584}")
    a(f"s_mov_b32 {s(sFF+3)}, 0x20000")
    a(f"""
    v_and_b32 v80, 31, v0
    v_lshrrev_b32 v81, 5, v0
    v_bfe_u32 v82, v0, 1, 3
    v_xor_b32 v82, v82, v81
    v_lshlrev_b32 v80, 7, v80
    v_add_u32 v80, {s(sM)}, v80
    """)
    for t in range(4):
        a(f"v_xor_b32 v83, {2*t}, v82")
        a(f"v_lshl_add_u32 {v(vXa+t)}, v83, 4, v80")
    a(f"""
    v_bfe_u32 v82, v0, 2, 2
    v_lshl_add_u32 v82, v81, 3, v82
    v_mul_u32_u24 v82, 192, v82
    v_bfe_u32 v83, v0, 4, 1
    v_lshl_add_u32 v82, v83, 5, v82
    v_and_b32 v83, 3, v0
    v_lshl_add_u32 {v(vWa)}, v83, 3, v82
    v_add_u32 {v(vWa+1)}, 0x10000, {v(vWa)}
    v_add_u32 {v(vWa+2)}, 0x20000, {v(vWa)}
    v_mov_b32 v84, 0
    v_mov_b32 v85, 0
    """)
    s1, s2 = 84, 85
    def stats(st):
        for t in range(4 * st, 4 * st + 4):
            for d in range(4):
                a(f"v_dot2c_f32_bf16 {v(s2)}, {v(XF(t)+d)}, {v(XF(t)+d)}")
                a(f"v_dot2c_f32_bf16 {v(s1)}, {s(sOne)}, {v(XF(t)+d)}")
    for st in range(8):
        vm.wait(("x", st))
        if st == 4:
            for t in range(4): a(f"v_add_u32 {v(vXa+t)}, 0x10000, {v(vXa+t)}")
        for t in range(4):
            a(f"ds_read_b128 {v(XF(4*st+t),4)}, {v(vXa+t)} offset:{XSLOT(st % 4)}")
            lg.issue()
        if st: stats(st - 1)
        lg.drain()
        if st < 6: wdma(st + 2)
    stats(7)
    rs, nb = 86, 87
    a(f"""
    s_nop 2
    v_mov_b32 v80, {v(s1)}
    v_mov_b32 v81, {v(s2)}
    s_nop 1
    v_permlane32_swap_b32 {v(s1)}, v80
    v_permlane32_swap_b32 {v(s2)}, v81
    v_add_f32 {v(s1)}, {v(s1)}, v80
    v_add_f32 {v(s2)}, {v(s2)}, v81
    v_mul_f32 {v(s1)}, {f32(1/512)}, {v(s1)}
    v_mul_f32 {v(s2)}, {f32(1/512)}, {v(s2)}
    v_fma_f32 {v(s2)}, -{v(s1)}, {v(s1)}, {v(s2)}
    v_max_f32 {v(s2)}, 0, {v(s2)}
    v_add_f32 {v(s2)}, {f32(1e-5)}, {v(s2)}
    v_rsq_f32 {v(rs)}, {v(s2)}
    s_nop 0
    v_mul_f32 {v(nb)}, {v(s1)}, {v(rs)}
    v_sub_f32 {v(nb)}, 0, {v(nb)}
    """)
    def norm(t, ds):
        for d in ds:
            r = XF(t) + d
            a(f"v_lshlrev_b32 v80, 16, {v(r)}")
            a(f"v_and_b32 v81, 0xffff0000, {v(r)}")
            a(f"v_fma_f32 v80, v80, {v(rs)}, {v(nb)}")
            a(f"v_fma_f32 v81, v81, {v(rs)}, {v(nb)}")
            a(f"v_cvt_pk_bf16_f32 {v(r)}, v80, v81")
    def PB(t):
        j, w = t // 4, t % 4
        return W01 + t * 3072 if j < 2 else XSLOT(j - 2) + w * 4096
    def trw(dst, t, T, tag):
        for u in range(2):
            ad = PB(t) + u * 768 + T * 64
            a(f"ds_read_b64_tr_b16 {v(dst+2*u,2)}, {v(vWa + (ad >> 16))} offset:{ad & 0xffff}")
            lg.issue(tag)
    vF = 88
    sF, sFM = 63, 64
    def fdma(st, vF):
        a(f"s_add_u32 m0, {s(sFM)}, {FSLOT[st % 4]}")
        a(f"s_add_u32 {s(sT0)}, {s(sF)}, {st*64*3584}")
        for i in range(7):
            if i == 4: a(f"s_add_u32 m0, {s(sFM)}, {FSLOT[st % 4] + 4096}"); a("s_nop 0")
            a(f"buffer_load_dwordx4 {v(vF+i)}, {s(sFF,4)}, {s(sT0)} offen offset:{1024*(i%4)} lds")
            vm.issue(("f", st))
    for i in range(7):
        a(f"""
        v_add_u32 v80, {64*i}, v0
        v_mul_u32_u24 v81, 18725, v80
        v_lshrrev_b32 v81, 18, v81
        v_mul_u32_u24 v82, 14, v81
        v_sub_u32 v82, v80, v82
        v_mul_u32_u24 v81, 3584, v81
        v_lshl_add_u32 v81, v82, 4, v81
        v_subrev_u32 {v(vF+i)}, {1024*(i%4)}, v81
        """)
    a(f"""
    s_lshr_b32 s3, {s(sW)}, 1
    s_mul_i32 {s(sF)}, s3, {32*3584}
    s_mul_i32 {s(sFM)}, s3, 7168
    s_mul_i32 s3, {s(sHP)}, 224
    s_add_u32 {s(sF)}, {s(sF)}, s3
    s_and_b32 s3, {s(sW)}, 1
    s_mul_i32 s3, s3, 14464
    s_add_u32 {s(sFM)}, {s(sFM)}, s3
    """)
    vm.wait(("w", 0))
    a("s_barrier")
    trw(WB, 0, 1, 0); trw(WB + 4, 0, 2, 0)
    fdma(0, vF)
    norm(0, range(4))
    for t in range(32):
        b, nb_ = WB + 8 * (t % 2), WB + 8 * ((t + 1) % 2)
        if t < 31:
            if (t + 1) % 4 == 0:
                vm.wait(("w", (t + 1) // 4)); a("s_barrier")
            trw(nb_, t + 1, 1, t + 1); trw(nb_ + 4, t + 1, 2, t + 1)
        if t == 31: a("s_nop 0")
        lg.wait(t)
        mfma(a, accK, b, XF(t), accK if t else None)
        if t < 31: norm(t + 1, (0, 1))
        mfma(a, accV, XF(t), b + 4, accV if t else None)
        if t < 31: norm(t + 1, (2, 3))
    QD = 4
    for t in range(QD): trw(WB + 4 * t, t, 0, ("q", t))
    sK0, sK1, sV0, sO0 = 65, 66, 67, 68
    vKo, vVo, vOo = 4, 5, 6
    a(f"""
    s_lshl_b32 s3, {s(sRB)}, 2
    s_add_u32 s3, s3, {s(sW)}
    s_lshl_b32 s3, s3, 10
    s_lshl_b32 {s(sK0)}, {s(sHP)}, 17
    s_add_u32 {s(sK0)}, {s(sK0)}, s3
    s_add_u32 {s(sK1)}, {s(sK0)}, {65536 + KF}
    s_add_u32 {s(sV0)}, {s(sK0)}, {VF}
    s_add_u32 {s(sO0)}, {s(sK0)}, {ONESF}
    v_and_b32 v80, 0x33, v0
    v_bfe_u32 v81, v0, 2, 1
    v_lshl_add_u32 v80, v81, 3, v80
    v_bfe_u32 v81, v0, 3, 1
    v_lshl_add_u32 v80, v81, 2, v80
    v_lshlrev_b32 {v(vKo)}, 4, v80
    v_and_b32 v80, 15, v0
    v_lshlrev_b32 v80, 4, v80
    v_lshrrev_b32 v81, 5, v0
    v_lshl_add_u32 v80, v81, 8, v80
    v_bfe_u32 v81, v0, 4, 1
    v_lshl_add_u32 {v(vVo)}, v81, 16, v80
    v_and_b32 v80, 1, v0
    v_lshlrev_b32 v80, 16, v80
    v_bfe_u32 v81, v0, 1, 1
    v_lshl_add_u32 {v(vOo)}, v81, 9, v80
    """)
    for r in range(8): a(f"v_cvt_pk_bf16_f32 {v(96+r)}, {v(accK+2*r)}, {v(accK+2*r+1)}")
    for r in range(8): a(f"v_cvt_pk_bf16_f32 {v(104+r)}, {v(accV+2*r)}, {v(accV+2*r+1)}")
    for r in range(4): a(f"v_mov_b32 {v(112+r)}, {s(sOne)}")
    assert KF == 0
    a(f"buffer_store_dwordx4 {v(96,4)}, {v(vKo)}, {s(sWS,4)}, {s(sK0)} offen"); vm.issue()
    a(f"buffer_store_dwordx4 {v(100,4)}, {v(vKo)}, {s(sWS,4)}, {s(sK1)} offen"); vm.issue()
    a(f"buffer_store_dwordx4 {v(104,4)}, {v(vVo)}, {s(sWS,4)}, {s(sV0)} offen"); vm.issue()
    a(f"buffer_store_dwordx4 {v(108,4)}, {v(vVo)}, {s(sWS,4)}, {s(sV0)} offen offset:512"); vm.issue()
    a(f"buffer_store_dwordx4 {v(112,4)}, {v(vOo)}, {s(sWS,4)}, {s(sO0)} offen"); vm.issue()
    for t in range(32):
        lg.wait(("q", t))
        mfma(a, accQ, WB + 4 * (t % QD), XF(t), accQ if t else None)
        if t + QD < 32: trw(WB + 4 * (t % QD), t + QD, 0, ("q", t + QD))
    vm.wait(("f", 0))
    a("s_barrier")
    vPk = 7
    a(f"s_lshl_b32 s3, {s(sW)}, 13")
    a(f"s_add_u32 s3, s3, {PARK}")
    a(f"v_lshl_add_u32 {v(vPk)}, v0, 4, s3")
    for t in range(8):
        a(f"ds_write_b128 {v(vPk)}, {v(XF(24+t),4)} offset:{1024*t}"); lg.issue("park")
    fdma(1, vF); fdma(2, vF)
    for r in range(16): a(f"v_mul_f32 {v(accQ+r)}, {f32(QSCALE)}, {v(accQ+r)}")
    for r in range(8): a(f"v_cvt_pk_bf16_f32 {v(96+r)}, {v(accQ+2*r)}, {v(accQ+2*r+1)}")
    a(f"s_add_u32 {s(sK0)}, {s(sK0)}, {QF}")
    a(f"s_add_u32 {s(sK1)}, {s(sK1)}, {QF}")
    vL16 = 1
    a(f"v_lshlrev_b32 {v(vL16)}, 4, v0")
    a(f"buffer_store_dwordx4 {v(96,4)}, {v(vL16)}, {s(sWS,4)}, {s(sK0)} offen"); vm.issue()
    a(f"buffer_store_dwordx4 {v(100,4)}, {v(vL16)}, {s(sWS,4)}, {s(sK1)} offen"); vm.issue()
    lg.drain()
    vF2 = 248
    for i in range(7): a(f"v_mov_b32 {v(vF2+i)}, {v(vF+i)}")
    vFa = 8
    a(f"""
    v_lshrrev_b32 v80, 5, v0
    v_bfe_u32 v82, v0, 2, 2
    v_lshl_add_u32 v82, v80, 3, v82
    v_mul_u32_u24 v82, 224, v82
    v_bfe_u32 v83, v0, 4, 1
    v_mul_u32_u24 v83, 14464, v83
    v_add_u32 v82, v82, v83
    v_and_b32 v83, 3, v0
    v_lshl_add_u32 {v(vFa)}, v83, 3, v82
    v_add_u32 {v(vFa+1)}, 57600, {v(vFa)}
    """)
    ACC = lambda T: 16 + 16 * T
    FB, NFB, FD = 224, 6, 4
    def xreg(t): return XF(t) if t < 24 else XF(t - 24)
    def trf(n):
        t, T = n // 7, n % 7
        st = t // 4
        if n % 28 == 0 and st > 0:
            vm.wait(("f", st)); a("s_barrier")
            if st + 2 < 8: fdma(st + 2, vF2)
        for u in range(2):
            ad = FSLOT[st % 4] + (16 * (t % 4) + 4 * u) * 224 + T * 32
            hi = ad >= 57600
            a(f"ds_read_b64_tr_b16 {v(FB + 4*(n % NFB) + 2*u, 2)}, {v(vFa + hi)} offset:{ad - 57600*hi}")
            lg.issue(("f", n))
    for n in range(FD): trf(n)
    sH0, sH1 = 65, 66
    for n in range(224):
        t, T = n // 7, n % 7
        if n + FD < 224: trf(n + FD)
        if T == 3 and 12 <= t < 20:
            a(f"ds_read_b128 {v(XF(t-12),4)}, {v(vPk)} offset:{1024*(t-12)}"); lg.issue(("p", t - 12))
        if T == 0 and t >= 24: lg.wait(("p", t - 24))
        lg.wait(("f", n))
        mfma(a, ACC(T), FB + 4 * (n % NFB), xreg(t), ACC(T) if t else None)
    a(f"""
    s_lshl_b32 s3, {s(sRB)}, 2
    s_add_u32 s3, s3, {s(sW)}
    s_mul_i32 {s(sH0)}, s3, {112*1024}
    s_mul_i32 s3, {s(sHP)}, {7*1024}
    s_add_u32 {s(sH0)}, {s(sH0)}, s3
    s_add_u32 {s(sH0)}, {s(sH0)}, {HF}
    s_add_u32 {s(sH1)}, {s(sH0)}, 4096
    """)
    for T in range(7):
        A0 = ACC(T)
        if T == 6: a("s_nop 0")
        for r in range(8): a(f"v_max_f32 {v(A0+r)}, 0, {v(A0+r)}")
        for r in range(8): a(f"v_mul_f32 {v(A0+r)}, {v(A0+r)}, {v(A0+8+r)}")
        for r in range(4): a(f"v_cvt_pk_bf16_f32 {v(A0+8+r)}, {v(A0+2*r)}, {v(A0+2*r+1)}")
        a(f"buffer_store_dwordx4 {v(A0+8,4)}, {v(vL16)}, {s(sWS,4)}, {s(sH0 if T < 4 else sH1)} offen offset:{1024*(T%4)}")

def g_part2(a):
    vm = Cnt(a, "vmcnt", 63); lg = Cnt(a, "lgkmcnt", 15)
    a("s_waitcnt lgkmcnt(0)")
    srd(a, sWS, 22, WS_BYTES); srd(a, sWD, 16, 1792 * 1024); srd(a, sWO, 8, 512 * 1024)
    srd(a, sX, 4, 2048 * 1024); srd(a, sOUT, 18, 2048 * 1024)
    vD0, vD1, vH0, vH1, vR0, vR1, vXo, vRd = 2, 3, 4, 5, 6, 7, 8, 9
    ACC = lambda sa, sb: 16 + 16 * (sa + 2 * sb)
    HB = lambda n, sa: 80 + 8 * (n % 8) + 4 * sa
    WBf = lambda n, sb: 144 + 8 * (n % 8) + 4 * sb
    sM, sD, sT0, sH, sO, sRT, sCB = 56, 57, 58, 59, 60, 61, 62
    RING = 0
    a(f"""
    s_lshl_b32 {s(sM)}, {s(sW)}, 14
    s_lshr_b32 {s(sCB)}, {s(sHP)}, 1
    s_lshl_b32 {s(sCB)}, {s(sCB)}, 7
    s_lshl_b32 {s(sRT)}, {s(sRB)}, 2
    s_and_b32 s3, {s(sHP)}, 1
    s_lshl_b32 s3, s3, 1
    s_add_u32 {s(sRT)}, {s(sRT)}, s3
    v_lshrrev_b32 v10, 3, v0
    v_lshlrev_b32 v10, 10, v10
    v_bfe_u32 v11, v0, 4, 1
    v_lshlrev_b32 v11, 2, v11
    v_and_b32 v12, 7, v0
    v_xor_b32 v11, v11, v12
    v_lshl_add_u32 {v(vD0)}, v11, 4, v10
    v_add_u32 {v(vD1)}, 7168, {v(vD0)}
    s_mul_i32 {s(sD)}, {s(sW)}, {28*16384}
    s_add_u32 {s(sD)}, {s(sD)}, {s(sCB)}
    """)
    def wdma(n):
        a(f"s_add_u32 m0, {s(sM)}, {RING + 2048*(n % 8)}")
        if n < 28: a(f"s_add_u32 {s(sT0)}, {s(sD)}, {16384*n}")
        else: a(f"s_add_u32 {s(sT0)}, {s(sO)}, {16384*(n-28)}")
        for e in range(2):
            a(f"buffer_load_dwordx4 {v(vD0+e)}, {s(sWD if n < 28 else sWO,4)}, {s(sT0)} offen offset:{1024*e} lds")
            vm.issue(("w", n))
    a(f"""
    s_lshl_b32 {s(sO)}, {s(sW)}, 17
    s_add_u32 {s(sO)}, {s(sO)}, {s(sCB)}
    s_and_b32 s3, {s(sW)}, 1
    s_mul_i32 s3, s3, {112*1024}
    v_lshl_add_u32 {v(vH0)}, v0, 4, s3
    s_sub_u32 s3, {112*1024}, s3
    v_lshl_add_u32 {v(vH1)}, v0, 4, s3
    s_mul_i32 {s(sH)}, {s(sRT)}, {112*1024}
    s_mul_i32 s3, {s(sW)}, {28*1024}
    s_add_u32 {s(sH)}, {s(sH)}, s3
    s_add_u32 {s(sH)}, {s(sH)}, {HF}
    """)
    sH4 = 63
    def hload(n):
        if n % 4 == 0: a(f"s_add_u32 {s(sH4)}, {s(sH)}, {1024*n}")
        for sa in range(2):
            a(f"buffer_load_dwordx4 {v(HB(n,sa),4)}, {v(vH0+sa)}, {s(sWS,4)}, {s(sH4)} offen offset:{1024*(n%4)}")
            vm.issue(("h", n))
    a(f"""
    s_and_b32 s3, {s(sW)}, 1
    s_add_u32 s3, s3, {s(sRT)}
    s_lshl_b32 s3, s3, 15
    s_add_u32 s3, s3, {s(sCB)}
    s_lshr_b32 {s(sT0)}, {s(sW)}, 1
    s_lshl_b32 {s(sT0)}, {s(sT0)}, 6
    s_add_u32 s3, s3, {s(sT0)}
    v_and_b32 v10, 31, v0
    v_lshl_add_u32 v10, v10, 10, s3
    v_lshrrev_b32 v11, 5, v0
    v_lshl_add_u32 {v(vXo)}, v11, 3, v10
    """)
    for g in range(4):
        a(f"buffer_load_dwordx2 {v(208+2*g,2)}, {v(vXo)}, {s(sX,4)}, 0 offen offset:{16*g}"); vm.issue("x")
    for n in range(8): wdma(n); hload(n)
    a(f"""
    v_lshl_add_u32 {v(vXo)}, v11, 4, v10
    v_bfe_u32 v12, v0, 2, 2
    v_lshl_add_u32 v12, v11, 2, v12
    v_lshlrev_b32 v12, 7, v12
    v_add_u32 v12, {s(sM)}, v12
    v_and_b32 v13, 1, v0
    v_lshl_add_u32 v12, v13, 3, v12
    v_bfe_u32 v13, v0, 1, 1
    v_bfe_u32 v14, v0, 4, 1
    v_lshl_add_u32 v13, v14, 1, v13
    v_bfe_u32 v14, v0, 3, 1
    s_lshr_b32 s3, {s(sW)}, 1
    v_xor_b32 v14, s3, v14
    v_lshl_add_u32 v13, v14, 2, v13
    v_lshl_add_u32 {v(vR0)}, v13, 4, v12
    v_xor_b32 {v(vR1)}, 64, {v(vR0)}
    """)
    vm.wait("x")
    for g in range(4):
        for d in range(2):
            a(f"v_lshlrev_b32 {v(ACC(0,0)+4*g+2*d)}, 16, {v(208+2*g+d)}")
            a(f"v_and_b32 {v(ACC(0,0)+4*g+2*d+1)}, 0xffff0000, {v(208+2*g+d)}")
    def trw(n):
        vm.wait(("w", n))
        for sb in range(2):
            for u in range(2):
                a(f"ds_read_b64_tr_b16 {v(WBf(n,sb)+2*u,2)}, {v(vR0+sb)} offset:{RING + 2048*(n%8) + 1024*u}")
                lg.issue(("w", n))
    def mm(n):
        for sb in range(2):
            for sa in range(2):
                first = n == 0 and (sa, sb) != (0, 0)
                mfma(a, ACC(sa, sb), WBf(n, sb), HB(n, sa), None if first else ACC(sa, sb))
    trw(0)
    for n in range(28):
        trw(n + 1)
        lg.wait(("w", n)); vm.wait(("h", n))
        mm(n)
        wdma(n + 8)
        if n + 8 < 28: hload(n + 8)
    for n in range(29, 36):
        trw(n)
        if len(lg.q) > 8: lg.wait(("w", n - 1))
    a(f"""
    s_lshl_b32 {s(sH)}, {s(sRT)}, 15
    s_lshl_b32 s3, {s(sW)}, 13
    s_add_u32 {s(sH)}, {s(sH)}, s3
    s_add_u32 {s(sH)}, {s(sH)}, {OF}
    s_add_u32 {s(sH4)}, {s(sH)}, 4096
    s_and_b32 s3, {s(sW)}, 1
    s_lshl_b32 s3, s3, 15
    v_lshl_add_u32 {v(vH0)}, v0, 4, s3
    v_xor_b32 {v(vH1)}, 0x8000, {v(vH0)}
    """)
    for n in range(28, 36):
        for sa in range(2):
            a(f"buffer_load_dwordx4 {v(HB(n,sa),4)}, {v(vH0+sa)}, {s(sWS,4)}, {s(sH if n < 32 else sH4)} offen offset:{1024*(n%4)}")
            vm.issue(("h", n))
    lg.drain()
    RED = 65536
    a(f"v_lshlrev_b32 v10, 4, v0")
    for sg in range(1, 4):
        a(f"s_xor_b32 s3, {s(sW)}, {sg}")
        a(f"s_lshl_b32 {s(sT0)}, s3, 14")
        a(f"s_lshl_b32 {s(sD)}, {s(sW)}, 12")
        a(f"s_add_u32 {s(sT0)}, {s(sT0)}, {s(sD)}")
        a(f"s_add_u32 {s(sT0)}, {s(sT0)}, {RED}")
        a(f"v_add_u32 {v(10+sg)}, {s(sT0)}, v10")
        a(f"s_lshl_b32 s3, s3, 12")
        a(f"s_add_u32 s3, s3, {s(sM)}")
        a(f"s_add_u32 s3, s3, {RED}")
        a(f"v_add_u32 {v(208+sg)}, s3, v10")
    for n in range(28, 36):
        vm.wait(("h", n))
        mm(n)
    a("s_nop 9")
    for sg in (1, 2, 3):
        for q in range(4):
            a(f"ds_write_b128 {v(10+sg)}, {v(16+16*sg+4*q,4)} offset:{1024*q}")
    a("s_waitcnt lgkmcnt(0)")
    a("s_barrier")
    for sg in (1, 2, 3):
        for q in range(4):
            a(f"ds_read_b128 {v(16+16*sg+4*q,4)}, {v(208+sg)} offset:{1024*q}"); lg.issue(sg)
    for sg in (1, 2, 3):
        lg.wait(sg)
        for r in range(16): a(f"v_add_f32 {v(16+r)}, {v(16+r)}, {v(16+16*sg+r)}")
    for r in range(8): a(f"v_cvt_pk_bf16_f32 {v(80+r)}, {v(16+2*r)}, {v(16+2*r+1)}")
    a("s_nop 1")
    for p in range(2):
        a(f"v_permlane32_swap_b32 {v(80+4*p)}, {v(82+4*p)}")
        a(f"v_permlane32_swap_b32 {v(81+4*p)}, {v(83+4*p)}")
    for p in range(2):
        a(f"buffer_store_dwordx4 {v(80+4*p,4)}, {v(vXo)}, {s(sOUT,4)}, 0 offen offset:{32*p}")

def a_part(a, name):
    Q = lambda q: 8 + 4 * q
    C = lambda q: 24 + 16 * q
    O = lambda q: 88 + 16 * q
    S = lambda i: 152 + 16 * (i % 2)
    K = lambda r: 184 + 4 * (r % 4)
    V0 = lambda r: 200 + 4 * (r % 4)
    V1 = lambda r: 216 + 4 * (r % 4)
    vK, vV, vI, vT = 1, 2, 3, 232
    sHD, sKH, sB, sCur, sNxt, sIt, sPass, sQ = 56, 57, 58, 59, 60, 61, 62, 63
    a("s_waitcnt lgkmcnt(0)")
    srd(a, sWS, 22, WS_BYTES)
    a(f"""
    s_and_b32 {s(sHD)}, {s(sW)}, 1
    s_lshr_b32 {s(sKH)}, {s(sW)}, 1
    s_lshl_b32 s3, {s(sHP)}, 1
    s_add_u32 {s(sHD)}, {s(sHD)}, s3
    s_lshl_b32 {s(sB)}, {s(sHD)}, 16
    s_lshl_b32 s3, {s(sRB)}, 12
    s_add_u32 {s(sQ)}, {s(sB)}, s3
    s_add_u32 {s(sQ)}, {s(sQ)}, {QF}
    s_lshl_b32 s3, {s(sKH)}, 15
    s_add_u32 {s(sB)}, {s(sB)}, s3
    v_lshlrev_b32 {v(vK)}, 4, v0
    s_lshl_b32 s3, {s(sKH)}, 11
    v_xor_b32 v4, s3, {v(vK)}
    v_xor_b32 v5, 0x800, v4
    """)
    for q in range(4):
        a(f"buffer_load_dwordx4 {v(Q(q),4)}, {v(4 + q//2)}, {s(sWS,4)}, {s(sQ)} offen offset:{1024*(q%2)}")
    a(f"""
    v_and_b32 v6, 15, v0
    v_lshlrev_b32 v6, 4, v6
    v_lshrrev_b32 v7, 5, v0
    v_lshl_add_u32 v6, v7, 8, v6
    v_add_u32 v6, {VF}, v6
    v_mov_b32 v7, {ONESF}
    v_and_b32 {v(vT)}, 16, v0
    v_cmp_eq_u32 vcc, 0, {v(vT)}
    v_mov_b32 {v(vI)}, 0xdddddddd
    s_mov_b32 {s(sPass)}, 0
    v_cndmask_b32 {v(vV)}, v7, v6, vcc
    """)
    def ldK(r, so): a(f"buffer_load_dwordx4 {v(K(r),4)}, {v(vK)}, {s(sWS,4)}, {s(so)} offen offset:{1024*(r%4)}")
    def ldV(sx, r, so): a(f"buffer_load_dwordx4 {v((V0,V1)[sx](r),4)}, {v(vV)}, {s(sWS,4)}, {s(so)} offen offset:{1024*(r%4) + 512*sx}")
    def setC():
        for q in range(4): a(f"v_mov_b32 {v(C(q)+1)}, {v(C(q))}")
        a("s_nop 0")
        for q in range(4): a(f"v_permlane32_swap_b32 {v(C(q))}, {v(C(q)+1)}")
        for q in range(4): a(f"v_max_f32 {v(C(q))}, {v(C(q))}, {v(C(q)+1)}")
        for q in range(4):
            a(f"v_sub_f32 {v(C(q))}, 0, {v(C(q))}")
            for r in range(1, 16): a(f"v_mov_b32 {v(C(q)+r)}, {v(C(q))}")
    def loads():
        for r in range(4):
            ldK(r, sB); ldV(0, r, sB)
            if r < 3: ldV(1, r, sB)
    loads()
    a("s_waitcnt vmcnt(10)")
    for q in range(4): mfma(a, C(q), K(0), Q(q), None)
    a("s_nop 8")
    for q in range(4):
        if q == 3: a("s_nop 0")
        c = C(q)
        a(f"v_max3_f32 {v(c)}, {v(c)}, {v(c+1)}, {v(c+2)}")
        for r in range(3, 15, 2): a(f"v_max3_f32 {v(c)}, {v(c)}, {v(c+r)}, {v(c+r+1)}")
        a(f"v_max_f32 {v(c)}, {v(c)}, {v(c+15)}")
    setC()
    a.label(name + "_restart")
    mfma(a, S(0), K(0), Q(0), C(0))
    for q in range(4):
        for r in range(9): a(f"v_mov_b32 {v(O(q)+r)}, 0")
    for r in range(8): a(f"v_mov_b32 {v(S(1)+8+r)}, 0")
    for r in range(4): a(f"v_mov_b32 {v(V1(3)+r)}, 0")
    a(f"s_mov_b32 {s(sCur)}, {s(sB)}")
    a(f"s_add_u32 {s(sNxt)}, {s(sB)}, 4096")
    a(f"s_mov_b32 {s(sIt)}, 0")
    a("s_waitcnt vmcnt(8)")
    a(".p2align 6")
    a.label(name + "_loop")
    def sm(o, A, B): a(f"v_smfmac_f32_32x32x32_bf16 {v(o,16)}, {v(A,4)}, {v(B,8)}, {v(vI)}")
    for i in range(16):
        kt, q = i // 4, i % 4
        X, Y = S(i), S(i + 1)
        e = lambda r: a(f"v_exp_f32 {v(X+r)}, {v(X+r)}")
        e(0); e(1)
        sm(O((q - 1) % 4), V1((i - 1) // 4), Y + 8)
        if q == 0: ldV(1, kt + 3, sCur if kt == 0 else sNxt)
        e(2); e(3); e(4)
        if q == 3: a("s_waitcnt vmcnt(7)")
        mfma(a, Y, K((i + 1) // 4), Q((q + 1) % 4), C((q + 1) % 4))
        if q == 2: ldK(kt, sNxt)
        for r in range(5, 10): e(r)
        sm(O(q), V0(kt), X)
        if q == 3: ldV(0, kt, sNxt)
        if i == 15:
            a(f"s_mov_b32 {s(sCur)}, {s(sNxt)}")
            a(f"s_add_u32 {s(sNxt)}, {s(sNxt)}, 4096")
            a(f"s_add_u32 {s(sIt)}, {s(sIt)}, 1")
            a(f"s_cmp_eq_u32 {s(sIt)}, 7")
            a(f"s_cselect_b32 {s(sNxt)}, {s(sB)}, {s(sNxt)}")
            a(f"s_cmp_lt_u32 {s(sIt)}, 8")
        for r in range(10, 16): e(r)
    a(f"s_cbranch_scc1 {name}_loop")
    a("s_nop 0")
    sm(O(3), V1(3), S(1) + 8)
    a(f"s_mov_b32 s64, {f32(2.0**-40)}")
    a(f"s_mov_b32 s65, {f32(2.0**40)}")
    a(f"s_mov_b32 s66, 0x7f800000")
    a("s_mov_b64 s[68:69], -1")
    for q in range(4):
        o = O(q)
        if q == 3: a("s_nop 0")
        a(f"v_maximum3_f32 {v(vT)}, |{v(o)}|, |{v(o+1)}|, |{v(o+2)}|")
        a(f"v_maximum3_f32 {v(vT)}, {v(vT)}, |{v(o+3)}|, |{v(o+4)}|")
        a(f"v_maximum3_f32 {v(vT)}, {v(vT)}, |{v(o+5)}|, |{v(o+6)}|")
        a(f"v_maximum3_f32 {v(vT)}, {v(vT)}, |{v(o+7)}|, |{v(o+7)}|")
        a(f"v_cmp_le_f32 s[70:71], s64, {v(o+8)}")
        a(f"v_cmp_ge_f32 s[72:73], s65, {v(o+8)}")
        a(f"v_cmp_gt_f32 vcc, s66, {v(vT)}")
        a("s_and_b64 s[68:69], s[68:69], s[70:71]")
        a("s_and_b64 s[68:69], s[68:69], s[72:73]")
        a("s_and_b64 s[68:69], s[68:69], vcc")
    a("s_cmp_eq_u64 s[68:69], -1")
    a(f"s_cbranch_scc1 {name}_merge")
    a(f"s_cmp_eq_u32 {s(sPass)}, 1")
    a(f"s_cbranch_scc1 {name}_merge")
    a(f"s_mov_b32 {s(sPass)}, 1")
    a("s_waitcnt vmcnt(0)")
    for q in range(4): a(f"v_mov_b32 {v(C(q))}, 0xff800000")
    a(f"s_mov_b32 {s(sCur)}, {s(sB)}")
    a(f"s_mov_b32 {s(sIt)}, 0")
    a.label(name + "_maxloop")
    ldK(0, sCur)
    a("s_waitcnt vmcnt(0)")
    for q in range(4): mfma(a, O(q), K(0), Q(q), None)
    a("s_nop 11")
    for q in range(4):
        for r in range(0, 16, 2): a(f"v_max3_f32 {v(C(q))}, {v(C(q))}, {v(O(q)+r)}, {v(O(q)+r+1)}")
    a(f"s_add_u32 {s(sCur)}, {s(sCur)}, 1024")
    a(f"s_add_u32 {s(sIt)}, {s(sIt)}, 1")
    a(f"s_cmp_lt_u32 {s(sIt)}, 32")
    a(f"s_cbranch_scc1 {name}_maxloop")
    setC()
    loads()
    a("s_waitcnt vmcnt(10)")
    a(f"s_branch {name}_restart")
    a.label(name + "_merge")
    MRG = 0
    a(f"""
    s_mul_i32 s3, {s(sW)}, 5120
    v_add_u32 v4, s3, {v(vK)}
    s_xor_b32 s64, {s(sW)}, 2
    s_mul_i32 s64, s64, 5120
    v_add_u32 v5, s64, {v(vK)}
    v_lshlrev_b32 v6, 3, v0
    v_add_u32 v7, s64, v6
    v_add_u32 v6, s3, v6
    v_mov_b32 {v(O(2)+9)}, {v(C(2))}
    v_mov_b32 {v(O(3)+9)}, {v(C(3))}
    """)
    for j in range(2):
        o = O(2 + j)
        a(f"ds_write_b128 v4, {v(o,4)} offset:{MRG + 2560*j}")
        a(f"ds_write_b128 v4, {v(o+4,4)} offset:{MRG + 2560*j + 1024}")
        a(f"ds_write_b64 v6, {v(o+8,2)} offset:{MRG + 2560*j + 2048}")
    a("s_waitcnt lgkmcnt(0)")
    a("s_barrier")
    for j in range(2):
        o = O(2 + j)
        a(f"ds_read_b64 {v(o+8,2)}, v7 offset:{MRG + 2560*j + 2048}")
        a(f"ds_read_b128 {v(o,4)}, v5 offset:{MRG + 2560*j}")
        a(f"ds_read_b128 {v(o+4,4)}, v5 offset:{MRG + 2560*j + 1024}")
    a(f"""
    s_lshl_b32 s3, {s(sRB)}, 2
    s_lshl_b32 s64, {s(sKH)}, 1
    s_add_u32 s3, s3, s64
    s_lshl_b32 s3, s3, 15
    s_lshl_b32 s64, {s(sHD)}, 10
    s_add_u32 s3, s3, s64
    s_add_u32 s64, s3, {OF}
    s_add_u32 s65, s64, 32768
    """)
    for j in range(2):
        oa, ob, na = O(j), O(2 + j), C(j)
        t = vT + 8 * j
        a(f"s_waitcnt lgkmcnt({3 if j == 0 else 0})")
        a(f"""
        v_min_f32 {v(t)}, {v(na)}, {v(ob+9)}
        v_sub_f32 {v(t+1)}, {v(t)}, {v(na)}
        v_sub_f32 {v(t+2)}, {v(t)}, {v(ob+9)}
        v_exp_f32 {v(t+1)}, {v(t+1)}
        v_exp_f32 {v(t+2)}, {v(t+2)}
        v_mul_f32 {v(t)}, {v(oa+8)}, {v(t+1)}
        v_fma_f32 {v(t)}, {v(ob+8)}, {v(t+2)}, {v(t)}
        v_rcp_f32 {v(t)}, {v(t)}
        s_nop 0
        v_mul_f32 {v(t+1)}, {v(t+1)}, {v(t)}
        v_mul_f32 {v(t+2)}, {v(t+2)}, {v(t)}
        """)
        for r in range(8): a(f"v_mul_f32 {v(oa+r)}, {v(oa+r)}, {v(t+1)}")
        for r in range(8): a(f"v_fma_f32 {v(oa+r)}, {v(ob+r)}, {v(t+2)}, {v(oa+r)}")
        for r in range(4): a(f"v_cvt_pk_bf16_f32 {v(t+4+r)}, {v(oa+2*r)}, {v(oa+2*r+1)}")
        a(f"buffer_store_dwordx4 {v(t+4,4)}, {v(vK)}, {s(sWS,4)}, {s(64+j)} offen")

def build():
    head = open("cdna_kernels/%s.s.ref" % NAME).read().split("; Override launch")[0]
    ks = [("ka_kernel", 163840), ("kb_kernel", 32768), ("kc_kernel", 131072)]
    out = head
    for k, lds in ks:
        out += "; @launch kernel=%s grid=(256,1,1) block=(256,1,1) lds=%d\n" % (k, lds)
    out += '.amdgcn_target "amdgcn-amd-amdhsa--gfx950"\n.text\n'
    for k, lds in ks:
        a = Asm()
        a(".globl " + k)
        entry(a, k)
        if k == "ka_kernel": g_part1(a)
        elif k == "kb_kernel": a_part(a, k)
        else: g_part2(a)
        finish(a, k)
        bad = check(a.lines)
        for b in bad: print("HAZARD %s: need %d have %d\n    %s\n    %s" % (k, b[2], b[3], b[4], b[5]), file=sys.stderr)
        out += a.text()
    out += '.section .rodata,"a"\n'
    for k, lds in ks:
        out += ".p2align 6\n" + desc(k)
    return out

if __name__ == "__main__":
    path = sys.argv[1] if len(sys.argv) > 1 else "cdna_kernels/%s.s" % NAME
    open(path, "w").write(build())
    print("wrote", path)
```
